```python
import torch

def _softmax(x, axis=-1):
    return torch.softmax(x, dim=axis)
def _gelu(x):
    return torch.nn.functional.gelu(x, approximate="tanh")
def _silu(x):
    return torch.nn.functional.silu(x)
def _sigmoid(x):
    return torch.sigmoid(x)
def _layernorm(x, axis=-1, eps=1e-5):
    m = x.mean(dim=axis, keepdim=True)
    v = x.var(dim=axis, keepdim=True, unbiased=False)
    return (x - m) / torch.sqrt(v + eps)
def _scatter_add(tgt, idx, src, axis=0):
    return tgt.clone().index_add_(axis, idx, src)
def _segment_sum(src, seg, n):
    out = torch.zeros((n,) + src.shape[1:], dtype=src.dtype)
    return out.index_add_(0, seg, src)
def _pad(x, pw):
    flat = tuple(v for pair in reversed(pw) for v in pair)
    return torch.nn.functional.pad(x, flat)

kernel_name = 'standalone__spectral_fnet__prompt'

def setup_inputs():

    _w = (lambda a: (lambda t: t.to(torch.bfloat16) if t.is_floating_point() else t)(torch.as_tensor(a)))
    B, S, D = 1, 2048, 640
    ns = torch.arange(S)[:, None] * torch.arange(S)[None, :]
    nd = torch.arange(D)[:, None] * torch.arange(D)[None, :]
    Ws_re = torch.cos(-2.0 * torch.pi * ns / S).to(float)
    Ws_im = torch.sin(-2.0 * torch.pi * ns / S).to(float)
    Wd_re = torch.cos(-2.0 * torch.pi * nd / D).to(float)
    Wd_im = torch.sin(-2.0 * torch.pi * nd / D).to(float)
    return {
        "x": _w((lambda *s: torch.randn(*s, dtype=torch.bfloat16) * 0.05)(B, S, D)),
        "dft_seq_re": _w(Ws_re),
        "dft_seq_im": _w(Ws_im),
        "dft_hid_re": _w(Wd_re),
        "dft_hid_im": _w(Wd_im),
    }

def reference(x, dft_seq_re, dft_seq_im, dft_hid_re, dft_hid_im):
    a = torch.einsum("bsd,ed->bse", x, dft_hid_re)
    b = torch.einsum("bsd,ed->bse", x, dft_hid_im)
    y = torch.einsum("ts,bse->bte", dft_seq_re, a) - torch.einsum("ts,bse->bte", dft_seq_im, b)
    return y
```

```python
import re

TRANS = ("v_exp_f32","v_log_f32","v_rcp_f32","v_rsq_f32","v_sqrt_f32","v_sin_f32","v_cos_f32")

def regs_of(tok):
    tok = tok.strip()
    tok = tok.lstrip('-')
    if tok.startswith('abs(') or tok.startswith('neg('):
        tok = tok[4:-1]
    m = re.fullmatch(r'([vsa])\[(\d+):(\d+)\]', tok)
    if m:
        return {(m.group(1), i) for i in range(int(m.group(2)), int(m.group(3))+1)}
    m = re.fullmatch(r'([vsa])(\d+)', tok)
    if m:
        return {(m.group(1), int(m.group(2)))}
    if tok == 'vcc': return {('s','vcc')}
    if tok == 'exec': return {('s','exec')}
    if tok in ('exec_lo','exec_hi'): return {('s','exec')}
    if tok == 'm0': return {('s','m0')}
    return set()

class Ins:
    def __init__(self, text):
        self.text = text
        t = text.split(';')[0].strip()
        self.mn = t.split()[0] if t else ''
        rest = t[len(self.mn):].strip()
        ops = [o.strip() for o in rest.split(',')] if rest else []
        if ops:
            ops[-1] = ops[-1].split()[0] if ops[-1] else ops[-1]
        self.ops = ops
        mn = self.mn
        self.w = set(); self.r = set()
        self.kind = 'other'
        R = [regs_of(o) for o in ops]
        allr = lambda l: set().union(*l) if l else set()
        if mn.startswith('v_mfma'):
            self.kind = 'mfma'; self.w = R[0]; self.r = allr(R[1:]); self.srcc = R[3]; self.ab = R[1] | R[2]
            self.passes = 8 if '32x32' in mn else 4
        elif mn.startswith('v_permlane') and 'swap' in mn:
            self.kind = 'valu'; self.w = R[0] | R[1]; self.r = R[0] | R[1]; self.perm = True
        elif mn.startswith('v_cmp'):
            self.kind = 'valu'; self.w = R[0]; self.r = allr(R[1:])
        elif mn.startswith('v_readfirstlane') or mn.startswith('v_readlane'):
            self.kind = 'valu'; self.w = R[0]; self.r = allr(R[1:]); self.rl = True
        elif mn.startswith('v_'):
            self.kind = 'valu'; self.w = R[0]; self.r = allr(R[1:])
            if mn.startswith('v_fmac') or mn.startswith('v_pk_fmac'): self.r |= R[0]
            if mn.startswith('v_cndmask') and len(ops) == 3: self.r |= {('s','vcc')}
        elif mn.startswith('buffer_load') or mn.startswith('global_load'):
            self.kind = 'vmem'
            if 'lds' in t.split() or '_lds_' in mn:
                self.r = allr(R) | {('s','m0')}; self.ldsdma = True
            else:
                self.w = R[0]; self.r = allr(R[1:])
        elif mn.startswith('buffer_store') or mn.startswith('global_store') or mn.startswith('buffer_atomic') or mn.startswith('global_atomic'):
            self.kind = 'vmem'; self.r = allr(R); self.store = True
            self.data = R[0] if mn.startswith('buffer') else R[1]
            self.wide = ('x3' in mn or 'x4' in mn)
            if 'atomic' in mn and 'sc0' in t.split(): self.w = R[0]
        elif mn.startswith('ds_read') or mn.startswith('ds_bpermute') or mn.startswith('ds_permute') or mn.startswith('ds_swizzle'):
            self.kind = 'ds'; self.w = R[0]; self.r = allr(R[1:])
        elif mn.startswith('ds_'):
            self.kind = 'ds'; self.r = allr(R)
        elif mn.startswith('s_load') or mn.startswith('s_buffer_load'):
            self.kind = 'smem'; self.w = R[0]; self.r = allr(R[1:])
        elif mn.startswith('s_cmp') or mn.startswith('s_cbranch') or mn in ('s_branch','s_waitcnt','s_barrier','s_endpgm','s_nop','s_setprio','s_sleep'):
            self.kind = 'salu'; self.r = allr(R)
        elif mn.startswith('s_'):
            self.kind = 'salu'; self.w = R[0]; self.r = allr(R[1:])
            if 'saveexec' in mn: self.w |= {('s','exec')}
        self.trans = any(mn.startswith(x) for x in TRANS)
    def states(self):
        if self.mn == 's_nop': return int(self.ops[0], 0) + 1
        if self.mn == '' or self.mn.endswith(':') or self.mn.startswith('.'): return 0
        return 1

def need(p, c):
    n = 0
    vw = {x for x in p.w if x[0] in 'va'}
    sw = {x for x in p.w if x[0] == 's'}
    if p.kind == 'valu':
        if c.kind == 'mfma' and (vw & c.r): n = max(n, 2)
        if c.kind == 'mfma' and ('s','exec') in sw: n = max(n, 4)
        if p.trans and c.kind == 'valu' and not c.trans and (vw & c.r): n = max(n, 1)
        if p.trans and c.kind != 'valu' and (vw & c.r): n = max(n, 1)
        if getattr(c, 'rl', False) and (vw & c.r): n = max(n, 1)
        if getattr(c, 'perm', False) and (vw & c.r): n = max(n, 2)
        if c.kind == 'valu' and 'dpp' in c.text and (vw & c.r): n = max(n, 2)
        if c.kind == 'vmem' and (sw & c.r): n = max(n, 5)
        if c.kind == 'valu' and (sw & c.r): n = max(n, 2)
        if c.kind in ('salu','smem') and (sw & c.r): n = max(n, 2)
        if getattr(c, 'rl', False) and ('s','exec') in sw: n = max(n, 4)
    if p.kind == 'mfma':
        big = {4: 8, 8: 12}[p.passes]
        if c.kind == 'mfma':
            if vw & c.ab: n = max(n, big)
            if vw & c.srcc:
                if not (c.srcc == p.w and c.passes == p.passes): n = max(n, big - 2)
            elif vw & c.w: n = max(n, big)
        elif c.kind in ('valu','vmem','ds'):
            if vw & (c.r | c.w): n = max(n, big)
        if c.kind == 'valu' and (p.srcc & c.w): n = max(n, {4: 3, 8: 7}[p.passes])
    if p.kind == 'salu':
        if ('s','m0') in sw and (getattr(c, 'ldsdma', False)): n = max(n, 1)
    if getattr(p, 'store', False) and p.wide:
        if p.data & c.w: n = max(n, 2)
    return n

class Asm:
    def __init__(self):
        self.lines = []
    def __call__(self, text):
        for l in text.strip().split('\n'):
            l = l.strip()
            if l: self.lines.append(l)
    def raw(self, text):
        self.lines.append(('raw', text))
    def finish(self):
        out = []; hist = []; nops = 0
        for l in self.lines:
            if isinstance(l, tuple):
                out.append(l[1]); continue
            c = Ins(l)
            if c.states() == 0:
                out.append(l); continue
            req = 0; dist = 0
            for p in reversed(hist[-24:]):
                nd = need(p, c)
                if nd - dist > req: req = nd - dist
                dist += p.states()
            while req > 0:
                k = min(req, 16)
                n = Ins('s_nop %d' % (k-1)); hist.append(n); out.append('    s_nop %d' % (k-1)); req -= k; nops += k
            hist.append(c); out.append('    ' + l)
        self.nops = nops
        return '\n'.join(out) + '\n'

class Regs:
    def __init__(self, start=1):
        self.n = start
    def alloc(self, k=1, align=1):
        self.n = (self.n + align - 1)//align*align
        b = self.n; self.n += k
        return b

def v(b, k=1):
    return 'v%d' % b if k == 1 else 'v[%d:%d]' % (b, b+k-1)
def s(b, k=1):
    return 's%d' % b if k == 1 else 's[%d:%d]' % (b, b+k-1)
import struct
def f32(x):
    return '0x%08x' % struct.unpack('<I', struct.pack('<f', x))[0]
```

```python
import sys
from asmlib import *

HEADER = open('standalone__spectral_fnet__prompt.s.ref').read().split('; Override launch')[0]
XB = 2048*640*2

def srd(a, d, src, nbytes):
    a(f's_mov_b32 {s(d)}, {s(src)}')
    a(f's_and_b32 {s(d+1)}, {s(src+1)}, 0xffff')
    a(f's_mov_b32 {s(d+2)}, {nbytes}')
    a(f's_mov_b32 {s(d+3)}, 0x20000')

def desc(name, nv, ns=40):
    nv4 = (nv+3)//4*4
    return f'''.amdhsa_kernel {name}
  .amdhsa_next_free_vgpr {nv}
  .amdhsa_next_free_sgpr {ns}
  .amdhsa_accum_offset {nv4}
  .amdhsa_group_segment_fixed_size 0
  .amdhsa_kernarg_size 64
  .amdhsa_user_sgpr_count 2
  .amdhsa_user_sgpr_kernarg_segment_ptr 1
  .amdhsa_system_sgpr_workgroup_id_x 1
.end_amdhsa_kernel
'''

def gen_k1():
    a = Asm(); R = Regs(1)
    vj = R.alloc(); vg = R.alloc(); vw = R.alloc(); voff = R.alloc(); vt = R.alloc(); vf = R.alloc(); vn = R.alloc()
    vwa = R.alloc(); vra = R.alloc()
    ang = R.alloc(); c = R.alloc(); sn = R.alloc(); ang2 = R.alloc(); c2 = R.alloc(); sn2 = R.alloc()
    X = [R.alloc(4, 2) for _ in range(2)]
    Are = [R.alloc(4, 2) for _ in range(2)]; Aim = [R.alloc(4, 2) for _ in range(2)]
    Fre = R.alloc(4, 2); Fim = R.alloc(4, 2)
    Dre = [R.alloc(4, 2) for _ in range(2)]; Dim = [R.alloc(4, 2) for _ in range(2)]
    P = [R.alloc(2, 2) for _ in range(4)]
    a('s_cmp_ge_u32 s2, 160')
    a('s_cbranch_scc1 L_k1_done')
    a('s_load_dwordx2 s[4:5], s[0:1], 0')
    a('s_load_dwordx2 s[6:7], s[0:1], 56')
    a(f'v_and_b32 {v(vj)}, 15, v0')
    a(f'v_bfe_u32 {v(vg)}, v0, 4, 2')
    a(f'v_lshrrev_b32 {v(vw)}, 6, v0')
    a(f'v_mul_u32_u24 {v(voff)}, 655360, {v(vg)}')
    a(f'v_mul_u32_u24 {v(vt)}, 20480, {v(vw)}')
    a(f'v_lshl_add_u32 {v(vt)}, {v(vj)}, 2, {v(vt)}')
    a(f'v_add_u32 {v(voff)}, {v(voff)}, {v(vt)}')
    a('s_and_b32 s3, s2, 7')
    a('s_mul_i32 s3, s3, 1280')
    a('s_lshr_b32 s16, s2, 3')
    a('s_lshl_b32 s16, s16, 6')
    a('s_add_u32 s16, s16, s3')
    so = {}
    for qq in range(2):
        for i in range(4):
            so[qq, i] = 16 + qq*4 + i
            if (qq, i) != (0, 0):
                a(f's_add_u32 {s(so[qq,i])}, s16, {i*163840 + qq*10240}')
    a('s_waitcnt lgkmcnt(0)')
    srd(a, 8, 4, XB)
    srd(a, 12, 6, XB)
    for qq in range(2):
        for i in range(4):
            a(f'buffer_load_dword {v(X[qq]+i)}, {v(voff)}, s[8:11], {s(so[qq,i])} offen')
    a(f'v_cvt_f32_u32 {v(vf)}, {v(vj)}')
    a(f'v_lshlrev_b32 {v(vn)}, 6, {v(vg)}')
    a(f'v_lshl_add_u32 {v(vn)}, {v(vw)}, 1, {v(vn)}')
    a(f'v_cvt_f32_u32 {v(vn)}, {v(vn)}')
    a(f'v_mul_f32 {v(vf)}, {f32(1/256)}, {v(vf)}')
    a(f'v_mul_f32 {v(vn)}, {v(vn)}, {v(vf)}')
    k = 0
    for qq in range(2):
        for i in range(4):
            A_, C_, S_ = ((ang, c, sn), (ang2, c2, sn2))[k & 1]; k += 1
            a(f'v_fmamk_f32 {v(A_)}, {v(vf)}, {f32(16*i+qq)}, {v(vn)}')
            a(f'v_cos_f32 {v(C_)}, {v(A_)}')
            a(f'v_sin_f32 {v(S_)}, {v(A_)}')
            a(f's_nop 0')
            a(f'v_cvt_pk_bf16_f32 {v(Are[qq]+i)}, {v(C_)}, {v(S_)}')
            a(f'v_cvt_pk_bf16_f32 {v(Aim[qq]+i)}, -{v(S_)}, {v(C_)}')
    a(f'v_cvt_f32_u32 {v(vn)}, {v(vg)}')
    a(f'v_mul_f32 {v(vn)}, {f32(64.0)}, {v(vn)}')
    a(f'v_mul_f32 {v(vn)}, {v(vn)}, {v(vf)}')
    for i in range(4):
        A_, C_, S_ = ((ang, c, sn), (ang2, c2, sn2))[k & 1]; k += 1
        a(f'v_fmamk_f32 {v(A_)}, {v(vf)}, {f32(16*i)}, {v(vn)}')
        a(f'v_cos_f32 {v(C_)}, {v(A_)}')
        a(f'v_sin_f32 {v(S_)}, {v(A_)}')
        a(f'v_mul_f32 {v(C_)}, 0.5, {v(C_)}')
        a(f'v_mul_f32 {v(S_)}, 0.5, {v(S_)}')
        a(f'v_cvt_pk_bf16_f32 {v(Fre+i)}, {v(C_)}, {v(S_)}')
        a(f'v_cvt_pk_bf16_f32 {v(Fim+i)}, -{v(S_)}, {v(C_)}')
    a(f'v_lshlrev_b32 {v(vwa)}, 12, {v(vg)}')
    a(f'v_lshrrev_b32 {v(vt)}, 1, {v(vw)}')
    a(f'v_lshl_add_u32 {v(vwa)}, {v(vt)}, 8, {v(vwa)}')
    a(f'v_lshl_add_u32 {v(vwa)}, {v(vj)}, 4, {v(vwa)}')
    a(f'v_and_b32 {v(vt)}, 1, {v(vw)}')
    a(f'v_lshl_add_u32 {v(vwa)}, {v(vt)}, 3, {v(vwa)}')
    a(f'v_and_b32 {v(vra)}, 63, v0')
    a(f'v_lshlrev_b32 {v(vra)}, 4, {v(vra)}')
    a(f'v_lshl_add_u32 {v(vra)}, {v(vw)}, 11, {v(vra)}')
    for qq in range(2):
        a(f's_waitcnt vmcnt({4*(1-qq)})')
        a(f'v_mfma_f32_16x16x32_bf16 {v(Dre[qq],4)}, {v(Are[qq],4)}, {v(X[qq],4)}, 0')
        a(f'v_mfma_f32_16x16x32_bf16 {v(Dim[qq],4)}, {v(Aim[qq],4)}, {v(X[qq],4)}, 0')
    for qq in range(2):
        for r in range(4):
            a(f'v_cvt_pk_bf16_f32 {v(P[r]+qq)}, {v(Dre[qq]+r)}, {v(Dim[qq]+r)}')
    for r in range(4):
        a(f'ds_write_b64 {v(vwa)}, {v(P[r],2)} offset:{1024*r}')
    a('s_waitcnt lgkmcnt(0)')
    a('s_barrier')
    for kk in range(2):
        a(f'ds_read_b128 {v(X[kk],4)}, {v(vra)} offset:{1024*kk}')
    for kk in range(2):
        a(f's_waitcnt lgkmcnt({1-kk})')
        a(f'v_mfma_f32_16x16x32_bf16 {v(Dre[kk],4)}, {v(Fre,4)}, {v(X[kk],4)}, 0')
        a(f'v_mfma_f32_16x16x32_bf16 {v(Dim[kk],4)}, {v(Fim,4)}, {v(X[kk],4)}, 0')
    for kk in range(2):
        for r in range(4):
            a(f'v_cvt_pk_bf16_f32 {v(P[r]+kk)}, {v(Dre[kk]+r)}, {v(Dim[kk]+r)}')
            a(f'buffer_store_dword {v(P[r]+kk)}, {v(voff)}, s[12:15], {s(so[kk,r])} offen')
    a('L_k1_done:')
    a('s_endpgm')
    return a.finish(), R.n

def gen_k2():
    a = Asm(); R = Regs(1)
    vj = R.alloc(); vg = R.alloc(); vw = R.alloc(); vo1 = R.alloc(); vo2 = R.alloc(); vt = R.alloc(); vt2 = R.alloc()
    vf = R.alloc(); vn = R.alloc(); vx = R.alloc()
    vw1 = R.alloc(); vw2 = R.alloc(); vra = R.alloc(); vst = R.alloc()
    T = [(R.alloc(), R.alloc(), R.alloc()) for _ in range(2)]
    X = [R.alloc(4, 2) for _ in range(5)]
    Mre = R.alloc(4, 2); Mim = R.alloc(4, 2)
    Fre = R.alloc(4, 2); Fim = R.alloc(4, 2)
    TC = [R.alloc(2, 2) for _ in range(5)]; TS = [R.alloc(2, 2) for _ in range(5)]
    H = [R.alloc(12, 2) for _ in range(3)]
    Dre = [R.alloc(4, 2) for _ in range(5)]; Dim = [R.alloc(4, 2) for _ in range(5)]
    P = [R.alloc(4, 2) for _ in range(4)]; P4 = R.alloc(4, 2)
    V = [R.alloc(12, 2) for _ in range(2)]
    tmp = [R.alloc(2, 2) for _ in range(4)]
    a('s_cmp_ge_u32 s2, 256')
    a('s_cbranch_scc1 L_k2_done')
    a('s_load_dwordx2 s[4:5], s[0:1], 56')
    a('s_load_dwordx2 s[6:7], s[0:1], 40')
    a('s_and_b32 s16, s2, 7')
    a('s_lshr_b32 s17, s2, 4')
    a('s_lshl_b32 s17, s17, 3')
    a('s_add_u32 s16, s16, s17')
    a('s_sub_u32 s17, 256, s16')
    a('s_cmp_eq_u32 s16, 0')
    a('s_cselect_b32 s17, 128, s17')
    a('s_bitcmp1_b32 s2, 3')
    a('s_cselect_b32 s18, s17, s16')
    a('s_sub_u32 s19, 256, s18')
    a('s_and_b32 s19, s19, 255')
    a('s_mul_i32 s20, s18, 10240')
    a('s_mul_i32 s21, s19, 10240')
    a(f'v_and_b32 {v(vj)}, 15, v0')
    a(f'v_bfe_u32 {v(vg)}, v0, 4, 2')
    a(f'v_lshrrev_b32 {v(vw)}, 6, v0')
    a(f'v_mov_b32 {v(vt)}, s20')
    a(f'v_mov_b32 {v(vt2)}, s21')
    a(f'v_cmp_gt_u32 vcc, 2, {v(vg)}')
    a(f'v_and_b32 {v(vo2)}, 1, {v(vg)}')
    a(f'v_mul_u32_u24 {v(vo2)}, 5120, {v(vo2)}')
    a(f'v_cndmask_b32 {v(vt)}, {v(vt2)}, {v(vt)}, vcc')
    a(f'v_mul_u32_u24 {v(vo1)}, 320, {v(vw)}')
    a(f'v_add3_u32 {v(vt)}, {v(vt)}, {v(vo2)}, {v(vo1)}')
    a(f'v_lshl_add_u32 {v(vo1)}, {v(vj)}, 2, {v(vt)}')
    a(f'v_and_b32 {v(vo2)}, 3, {v(vj)}')
    a(f'v_mul_u32_u24 {v(vo2)}, 80, {v(vo2)}')
    a(f'v_and_b32 {v(vt2)}, 12, {v(vj)}')
    a(f'v_add3_u32 {v(vo2)}, {v(vo2)}, {v(vt2)}, {v(vt)}')
    a('s_waitcnt lgkmcnt(0)')
    srd(a, 8, 4, XB)
    srd(a, 12, 6, XB)
    for t in range(4):
        for i in range(4):
            a(f'buffer_load_dword {v(X[t]+i)}, {v(vo1)}, s[8:11], 0 offen offset:{1280*i+80*t}')
    for i in range(4):
        a(f'buffer_load_dword {v(X[4]+i)}, {v(vo2)}, s[8:11], 0 offen offset:{1280*i+64}')
    k = [0]
    def sincos(mul, base_reg, step_reg):
        A_, C_, S_ = T[k[0] & 1]; k[0] += 1
        a(f'v_fmamk_f32 {v(A_)}, {v(step_reg)}, {f32(mul)}, {v(base_reg)}')
        a(f'v_cos_f32 {v(C_)}, {v(A_)}')
        a(f'v_sin_f32 {v(S_)}, {v(A_)}')
        return C_, S_
    a(f'v_lshrrev_b32 {v(vt)}, 1, {v(vj)}')
    a(f'v_lshlrev_b32 {v(vt)}, 8, {v(vt)}')
    a(f'v_add_u32 {v(vt)}, s18, {v(vt)}')
    a(f'v_cvt_f32_u32 {v(vf)}, {v(vt)}')
    a(f'v_mul_f32 {v(vf)}, {f32(1/2048)}, {v(vf)}')
    a(f'v_and_b32 {v(vt)}, 1, {v(vg)}')
    a(f'v_lshlrev_b32 {v(vt)}, 2, {v(vt)}')
    a(f'v_cvt_f32_u32 {v(vn)}, {v(vt)}')
    a(f'v_lshlrev_b32 {v(vx)}, 30, {v(vg)}')
    a(f'v_and_b32 {v(vx)}, 0x80000000, {v(vx)}')
    a(f'v_and_b32 {v(vt)}, 1, {v(vj)}')
    a(f'v_cvt_f32_u32 {v(vt)}, {v(vt)}')
    a(f'v_mul_f32 {v(vt)}, {f32(0.25)}, {v(vt)}')
    a(f'v_xor_b32 {v(vt)}, {v(vt)}, {v(vx)}')
    a(f'v_fma_f32 {v(vn)}, {v(vn)}, {v(vf)}, {v(vt)}')
    for i in range(4):
        C_, S_ = sincos(i, vn, vf)
        a(f'v_cvt_pk_bf16_f32 {v(Mre+i)}, {v(C_)}, {v(S_)}')
        a(f'v_cvt_pk_bf16_f32 {v(Mim+i)}, -{v(S_)}, {v(C_)}')
        a(f'v_xor_b32 {v(Mre+i)}, {v(Mre+i)}, {v(vx)}')
        a(f'v_xor_b32 {v(Mim+i)}, {v(Mim+i)}, {v(vx)}')
    a(f'v_cvt_f32_u32 {v(vt)}, {v(vj)}')
    a(f'v_cvt_f32_u32 {v(vt2)}, {v(vg)}')
    a(f'v_mul_f32 {v(vf)}, {f32(1/16)}, {v(vt)}')
    a(f'v_mul_f32 {v(vn)}, 4.0, {v(vt2)}')
    a(f'v_mul_f32 {v(vn)}, {v(vn)}, {v(vf)}')
    for i in range(4):
        C_, S_ = sincos(i, vn, vf)
        a(f'v_cvt_pk_bf16_f32 {v(Fre+i)}, {v(C_)}, {v(S_)}')
        a(f'v_cvt_pk_bf16_f32 {v(Fim+i)}, -{v(S_)}, {v(C_)}')
    a(f'v_add_f32 {v(vt2)}, {v(vt2)}, {v(vt2)}')
    a(f'v_mul_f32 {v(vf)}, {f32(1/640)}, {v(vt)}')
    a(f'v_mul_f32 {v(vn)}, {v(vt2)}, {v(vf)}')
    for tau in range(5):
        for par in range(2):
            A_ = T[k[0] & 1][0]; k[0] += 1
            a(f'v_fmamk_f32 {v(A_)}, {v(vf)}, {f32(8*tau+par)}, {v(vn)}')
            a(f'v_cos_f32 {v(TC[tau]+par)}, {v(A_)}')
            a(f'v_sin_f32 {v(TS[tau]+par)}, {v(A_)}')
    for o in range(3):
        if o:
            a(f'v_add_f32 {v(vt)}, {f32(16.0)}, {v(vt)}')
        a(f'v_mul_f32 {v(vf)}, {f32(1/40)}, {v(vt)}')
        a(f'v_mul_f32 {v(vn)}, {v(vt2)}, {v(vf)}')
        prev = None
        for sl in range(10):
            C_, S_ = sincos(8*(sl//2) + (sl & 1), vn, vf)
            if prev: a(prev)
            prev = f'v_cvt_pk_bf16_f32 {v(H[o]+sl)}, {v(C_)}, {v(S_)}'
        a(f'v_mov_b32 {v(H[o]+10)}, 0')
        a(prev)
        a(f'v_mov_b32 {v(H[o]+11)}, 0')
    for t0 in range(2):
        a(f'v_mov_b32 {v(V[t0]+10)}, 0')
        a(f'v_mov_b32 {v(V[t0]+11)}, 0')
    a(f'v_mul_u32_u24 {v(vt)}, {336*16}, {v(vg)}')
    a(f'v_mul_u32_u24 {v(vt2)}, {40*16}, {v(vw)}')
    a(f'v_add_u32 {v(vt)}, {v(vt)}, {v(vt2)}')
    a(f'v_lshl_add_u32 {v(vw1)}, {v(vj)}, 4, {v(vt)}')
    a(f'v_lshl_add_u32 {v(vw2)}, {v(vj)}, 2, {v(vt)}')
    a(f'v_mul_u32_u24 {v(vra)}, 336, {v(vw)}')
    a(f'v_mad_u32_u24 {v(vra)}, {v(vg)}, 40, {v(vra)}')
    a(f'v_bfe_u32 {v(vt)}, {v(vj)}, 1, 1')
    a(f'v_mul_u32_u24 {v(vt)}, 168, {v(vt)}')
    a(f'v_and_b32 {v(vt2)}, 1, {v(vj)}')
    a(f'v_mad_u32_u24 {v(vt)}, {v(vt2)}, 20, {v(vt)}')
    a(f'v_lshrrev_b32 {v(vt2)}, 2, {v(vj)}')
    a(f'v_add3_u32 {v(vra)}, {v(vra)}, {v(vt)}, {v(vt2)}')
    a(f'v_lshlrev_b32 {v(vra)}, 4, {v(vra)}')
    a(f'v_mul_u32_u24 {v(vst)}, 655360, {v(vw)}')
    a(f'v_lshl_add_u32 {v(vst)}, {v(vj)}, 5, {v(vst)}')
    a(f'v_lshl_add_u32 {v(vst)}, {v(vg)}, 3, {v(vst)}')
    a('s_mul_i32 s22, s18, 1280')
    a('s_add_u32 s23, s22, 327680')
    for t in range(5):
        a(f's_waitcnt vmcnt({4*(4-t)})')
        a(f'v_mfma_f32_16x16x32_bf16 {v(Dre[t],4)}, {v(Mre,4)}, {v(X[t],4)}, 0')
        a(f'v_mfma_f32_16x16x32_bf16 {v(Dim[t],4)}, {v(Mim,4)}, {v(X[t],4)}, 0')
    WOFF = [0, 320, 2688, 3008]
    for t in range(4):
        for r in range(4):
            a(f'v_cvt_pk_bf16_f32 {v(P[r]+t)}, {v(Dre[t]+r)}, {v(Dim[t]+r)}')
    for r in range(4):
        a(f'ds_write_b128 {v(vw1)}, {v(P[r],4)} offset:{WOFF[r]}')
    for r in range(4):
        a(f'v_cvt_pk_bf16_f32 {v(P4+r)}, {v(Dre[4]+r)}, {v(Dim[4]+r)}')
    for r in range(4):
        a(f'ds_write_b32 {v(vw2)}, {v(P4+r)} offset:{WOFF[r]+256}')
    a('s_waitcnt lgkmcnt(0)')
    a('s_barrier')
    for tau in range(5):
        a(f'ds_read_b128 {v(X[tau],4)}, {v(vra)} offset:{64*tau}')
    for tau in range(5):
        a(f's_waitcnt lgkmcnt({4-tau})')
        a(f'v_mfma_f32_16x16x32_bf16 {v(Dre[tau],4)}, {v(X[tau],4)}, {v(Fre,4)}, 0')
        a(f'v_mfma_f32_16x16x32_bf16 {v(Dim[tau],4)}, {v(X[tau],4)}, {v(Fim,4)}, 0')
    for tau in range(5):
        for t0 in range(2):
            ta, tb = tmp[2*t0], tmp[2*t0+1]
            re = v(Dre[tau]+2*t0, 2); im = v(Dim[tau]+2*t0, 2)
            a(f'v_pk_mul_f32 {v(ta,2)}, {re}, {v(TC[tau],2)}')
            a(f'v_pk_mul_f32 {v(tb,2)}, {im}, {v(TC[tau],2)}')
            a(f'v_pk_fma_f32 {v(ta,2)}, {im}, {v(TS[tau],2)}, {v(ta,2)}')
            a(f'v_pk_fma_f32 {v(tb,2)}, {re}, {v(TS[tau],2)}, {v(tb,2)} neg_lo:[0,1,0] neg_hi:[0,1,0]')
            for par in range(2):
                a(f'v_cvt_pk_bf16_f32 {v(V[t0]+2*tau+par)}, {v(ta+par)}, {v(tb+par)}')
    ACC = {}
    accs = Dre + Dim
    for t0 in range(2):
        for o in range(3):
            ACC[t0, o] = accs[t0*3+o]
    for st in range(3):
        for t0 in range(2):
            for o in range(3):
                c = '0' if st == 0 else v(ACC[t0,o],4)
                a(f'v_mfma_f32_16x16x32_bf16 {v(ACC[t0,o],4)}, {v(V[t0]+4*st,4)}, {v(H[o]+4*st,4)}, {c}')
    outs = P + [P4]
    for o in range(3):
        if o == 2:
            a('s_mov_b32 exec_lo, 0x00ff00ff')
            a('s_mov_b32 exec_hi, 0x00ff00ff')
        for t0 in range(2):
            d = outs[o] + 2*t0
            a(f'v_cvt_pk_bf16_f32 {v(d)}, {v(ACC[t0,o])}, {v(ACC[t0,o]+1)}')
            a(f'v_cvt_pk_bf16_f32 {v(d+1)}, {v(ACC[t0,o]+2)}, {v(ACC[t0,o]+3)}')
            a(f'buffer_store_dwordx2 {v(d,2)}, {v(vst)}, s[12:15], {s(22+t0)} offen offset:{512*o}')
    a('L_k2_done:')
    a('s_endpgm')
    return a.finish(), R.n

def build():
    k1, n1 = gen_k1(); k2, n2 = gen_k2()
    out = HEADER
    out += '; @launch kernel=fnet_col_kernel grid=(160,1,1) block=(512,1,1) lds=16384\n'
    out += '; @launch kernel=fnet_row_kernel grid=(256,1,1) block=(256,1,1) lds=21504\n'
    out += '.amdgcn_target "amdgcn-amd-amdhsa--gfx950"\n.text\n'
    for name, body in (('fnet_col_kernel', k1), ('fnet_row_kernel', k2)):
        out += f'.globl {name}\n.p2align 8\n.type {name},@function\n{name}:\n{body}'
    out += '.section .rodata,"a"\n.p2align 6\n' + desc('fnet_col_kernel', n1) + '.p2align 6\n' + desc('fnet_row_kernel', n2)
    return out

if __name__ == '__main__':
    dst = sys.argv[1] if len(sys.argv) > 1 else 'standalone__spectral_fnet__prompt.s'
    open(dst, 'w').write(build())
```

```python
import gen1
base = gen1.build()
L1 = '; @launch kernel=fnet_col_kernel grid=(160,1,1) block=(512,1,1) lds=16384\n'
L2 = '; @launch kernel=fnet_row_kernel grid=(256,1,1) block=(256,1,1) lds=21504\n'
LE = '; @launch kernel=fnet_nop_kernel grid=(1,1,1) block=(64,1,1) lds=0\n'
def with_nop(t):
    t = t.replace('.section .rodata', '.globl fnet_nop_kernel\n.p2align 8\n.type fnet_nop_kernel,@function\nfnet_nop_kernel:\n    s_endpgm\n.section .rodata')
    t += '.p2align 6\n' + gen1.desc('fnet_nop_kernel', 8)
    return t
V = {
 'a': base,
 'b': with_nop(base).replace(L1+L2, L1+L2+LE),
 'c': with_nop(base).replace(L1+L2, LE+L1+L2),
 'd': base.replace(L1+L2, L1+L1+L2),
 'e': base.replace(L1+L2, L1+L2+L2),
 'f': with_nop(base).replace(L1+L2, L1+L2+LE+LE+LE+LE),
}
for k,t in V.items():
    open(f'v1{k}.s','w').write(t)
```

```python
import sys
from asmlib import *

HEADER = open('standalone__spectral_fnet__prompt.s.ref').read().split('; Override launch')[0]
XB = 2048*640*2

def srd(a, d, src, nbytes):
    a(f's_mov_b32 {s(d)}, {s(src)}')
    a(f's_and_b32 {s(d+1)}, {s(src+1)}, 0xffff')
    a(f's_mov_b32 {s(d+2)}, {nbytes}')
    a(f's_mov_b32 {s(d+3)}, 0x20000')

def desc(name, nv, ns=40):
    nv4 = (nv+3)//4*4
    return f'''.amdhsa_kernel {name}
  .amdhsa_next_free_vgpr {nv}
  .amdhsa_next_free_sgpr {ns}
  .amdhsa_accum_offset {nv4}
  .amdhsa_group_segment_fixed_size 0
  .amdhsa_kernarg_size 64
  .amdhsa_user_sgpr_count 2
  .amdhsa_user_sgpr_kernarg_segment_ptr 1
  .amdhsa_system_sgpr_workgroup_id_x 1
.end_amdhsa_kernel
'''

def gen_k1():
    a = Asm(); R = Regs(1)
    vj = R.alloc(); vg = R.alloc(); vw = R.alloc(); voff = R.alloc(); vt = R.alloc(); vf = R.alloc(); vn = R.alloc()
    vwa = R.alloc(); vra = R.alloc()
    ang = R.alloc(); c = R.alloc(); sn = R.alloc(); ang2 = R.alloc(); c2 = R.alloc(); sn2 = R.alloc()
    X = [R.alloc(4, 2) for _ in range(2)]
    Are = [R.alloc(4, 2) for _ in range(2)]; Aim = [R.alloc(4, 2) for _ in range(2)]
    Fre = R.alloc(4, 2); Fim = R.alloc(4, 2)
    Dre = [R.alloc(4, 2) for _ in range(2)]; Dim = [R.alloc(4, 2) for _ in range(2)]
    P = [R.alloc(2, 2) for _ in range(4)]
    a('s_cmp_ge_u32 s2, 160')
    a('s_cbranch_scc1 L_k1_done')
    a.raw('; STAMP')
    a('s_load_dwordx2 s[4:5], s[0:1], 0')
    a('s_load_dwordx2 s[6:7], s[0:1], 56')
    a(f'v_and_b32 {v(vj)}, 15, v0')
    a(f'v_bfe_u32 {v(vg)}, v0, 4, 2')
    a(f'v_lshrrev_b32 {v(vw)}, 6, v0')
    a(f'v_mul_u32_u24 {v(voff)}, 655360, {v(vg)}')
    a(f'v_mul_u32_u24 {v(vt)}, 20480, {v(vw)}')
    a(f'v_lshl_add_u32 {v(vt)}, {v(vj)}, 2, {v(vt)}')
    a(f'v_add_u32 {v(voff)}, {v(voff)}, {v(vt)}')
    a('s_and_b32 s3, s2, 7')
    a('s_mul_i32 s3, s3, 1280')
    a('s_lshr_b32 s16, s2, 3')
    a('s_lshl_b32 s16, s16, 6')
    a('s_add_u32 s16, s16, s3')
    so = {}
    for qq in range(2):
        for i in range(4):
            so[qq, i] = 16 + qq*4 + i
            if (qq, i) != (0, 0):
                a(f's_add_u32 {s(so[qq,i])}, s16, {i*163840 + qq*10240}')
    a('s_waitcnt lgkmcnt(0)')
    a.raw('; STAMP')
    srd(a, 8, 4, XB)
    srd(a, 12, 6, XB)
    for qq in range(2):
        for i in range(4):
            a(f'buffer_load_dword {v(X[qq]+i)}, {v(voff)}, s[8:11], {s(so[qq,i])} offen')
    a(f'v_cvt_f32_u32 {v(vf)}, {v(vj)}')
    a(f'v_lshlrev_b32 {v(vn)}, 6, {v(vg)}')
    a(f'v_lshl_add_u32 {v(vn)}, {v(vw)}, 1, {v(vn)}')
    a(f'v_cvt_f32_u32 {v(vn)}, {v(vn)}')
    a(f'v_mul_f32 {v(vf)}, {f32(1/256)}, {v(vf)}')
    a(f'v_mul_f32 {v(vn)}, {v(vn)}, {v(vf)}')
    k = 0
    for qq in range(2):
        for i in range(4):
            A_, C_, S_ = ((ang, c, sn), (ang2, c2, sn2))[k & 1]; k += 1
            a(f'v_fmamk_f32 {v(A_)}, {v(vf)}, {f32(16*i+qq)}, {v(vn)}')
            a(f'v_cos_f32 {v(C_)}, {v(A_)}')
            a(f'v_sin_f32 {v(S_)}, {v(A_)}')
            a(f's_nop 0')
            a(f'v_cvt_pk_bf16_f32 {v(Are[qq]+i)}, {v(C_)}, {v(S_)}')
            a(f'v_cvt_pk_bf16_f32 {v(Aim[qq]+i)}, -{v(S_)}, {v(C_)}')
    a(f'v_cvt_f32_u32 {v(vn)}, {v(vg)}')
    a(f'v_mul_f32 {v(vn)}, {f32(64.0)}, {v(vn)}')
    a(f'v_mul_f32 {v(vn)}, {v(vn)}, {v(vf)}')
    for i in range(4):
        A_, C_, S_ = ((ang, c, sn), (ang2, c2, sn2))[k & 1]; k += 1
        a(f'v_fmamk_f32 {v(A_)}, {v(vf)}, {f32(16*i)}, {v(vn)}')
        a(f'v_cos_f32 {v(C_)}, {v(A_)}')
        a(f'v_sin_f32 {v(S_)}, {v(A_)}')
        a(f'v_mul_f32 {v(C_)}, 0.5, {v(C_)}')
        a(f'v_mul_f32 {v(S_)}, 0.5, {v(S_)}')
        a(f'v_cvt_pk_bf16_f32 {v(Fre+i)}, {v(C_)}, {v(S_)}')
        a(f'v_cvt_pk_bf16_f32 {v(Fim+i)}, -{v(S_)}, {v(C_)}')
    a(f'v_lshlrev_b32 {v(vwa)}, 12, {v(vg)}')
    a(f'v_lshrrev_b32 {v(vt)}, 1, {v(vw)}')
    a(f'v_lshl_add_u32 {v(vwa)}, {v(vt)}, 8, {v(vwa)}')
    a(f'v_lshl_add_u32 {v(vwa)}, {v(vj)}, 4, {v(vwa)}')
    a(f'v_and_b32 {v(vt)}, 1, {v(vw)}')
    a(f'v_lshl_add_u32 {v(vwa)}, {v(vt)}, 3, {v(vwa)}')
    a(f'v_and_b32 {v(vra)}, 63, v0')
    a(f'v_lshlrev_b32 {v(vra)}, 4, {v(vra)}')
    a(f'v_lshl_add_u32 {v(vra)}, {v(vw)}, 11, {v(vra)}')
    a.raw('; STAMP')
    for qq in range(2):
        a(f's_waitcnt vmcnt({4*(1-qq)})')
        a(f'v_mfma_f32_16x16x32_bf16 {v(Dre[qq],4)}, {v(Are[qq],4)}, {v(X[qq],4)}, 0')
        a(f'v_mfma_f32_16x16x32_bf16 {v(Dim[qq],4)}, {v(Aim[qq],4)}, {v(X[qq],4)}, 0')
    for qq in range(2):
        for r in range(4):
            a(f'v_cvt_pk_bf16_f32 {v(P[r]+qq)}, {v(Dre[qq]+r)}, {v(Dim[qq]+r)}')
    for r in range(4):
        a(f'ds_write_b64 {v(vwa)}, {v(P[r],2)} offset:{1024*r}')
    a('s_waitcnt lgkmcnt(0)')
    a.raw('; STAMP')
    a('s_barrier')
    a.raw('; STAMP')
    for kk in range(2):
        a(f'ds_read_b128 {v(X[kk],4)}, {v(vra)} offset:{1024*kk}')
    for kk in range(2):
        a(f's_waitcnt lgkmcnt({1-kk})')
        a(f'v_mfma_f32_16x16x32_bf16 {v(Dre[kk],4)}, {v(Fre,4)}, {v(X[kk],4)}, 0')
        a(f'v_mfma_f32_16x16x32_bf16 {v(Dim[kk],4)}, {v(Fim,4)}, {v(X[kk],4)}, 0')
    for kk in range(2):
        for r in range(4):
            a(f'v_cvt_pk_bf16_f32 {v(P[r]+kk)}, {v(Dre[kk]+r)}, {v(Dim[kk]+r)}')
            a(f'buffer_store_dword {v(P[r]+kk)}, {v(voff)}, s[12:15], {s(so[kk,r])} offen')
    a.raw('; STAMP')
    a.raw('; DUMP 0 6')
    a('L_k1_done:')
    a('s_endpgm')
    return a.finish(), R.n

def gen_k2():
    a = Asm(); R = Regs(1)
    vj = R.alloc(); vg = R.alloc(); vw = R.alloc(); vo1 = R.alloc(); vo2 = R.alloc(); vt = R.alloc(); vt2 = R.alloc()
    vf = R.alloc(); vn = R.alloc(); vx = R.alloc()
    vw1 = R.alloc(); vw2 = R.alloc(); vra = R.alloc(); vst = R.alloc()
    T = [(R.alloc(), R.alloc(), R.alloc()) for _ in range(2)]
    X = [R.alloc(4, 2) for _ in range(5)]
    Mre = R.alloc(4, 2); Mim = R.alloc(4, 2)
    Fre = R.alloc(4, 2); Fim = R.alloc(4, 2)
    TC = [R.alloc(2, 2) for _ in range(5)]; TS = [R.alloc(2, 2) for _ in range(5)]
    H = [R.alloc(12, 2) for _ in range(3)]
    Dre = [R.alloc(4, 2) for _ in range(5)]; Dim = [R.alloc(4, 2) for _ in range(5)]
    P = [R.alloc(4, 2) for _ in range(4)]; P4 = R.alloc(4, 2)
    V = [R.alloc(12, 2) for _ in range(2)]
    tmp = [R.alloc(2, 2) for _ in range(4)]
    a('s_cmp_ge_u32 s2, 256')
    a('s_cbranch_scc1 L_k2_done')
    a.raw('; STAMP')
    a('s_load_dwordx2 s[4:5], s[0:1], 56')
    a('s_load_dwordx2 s[6:7], s[0:1], 40')
    a('s_and_b32 s16, s2, 7')
    a('s_lshr_b32 s17, s2, 4')
    a('s_lshl_b32 s17, s17, 3')
    a('s_add_u32 s16, s16, s17')
    a('s_sub_u32 s17, 256, s16')
    a('s_cmp_eq_u32 s16, 0')
    a('s_cselect_b32 s17, 128, s17')
    a('s_bitcmp1_b32 s2, 3')
    a('s_cselect_b32 s18, s17, s16')
    a('s_sub_u32 s19, 256, s18')
    a('s_and_b32 s19, s19, 255')
    a('s_mul_i32 s20, s18, 10240')
    a('s_mul_i32 s21, s19, 10240')
    a(f'v_and_b32 {v(vj)}, 15, v0')
    a(f'v_bfe_u32 {v(vg)}, v0, 4, 2')
    a(f'v_lshrrev_b32 {v(vw)}, 6, v0')
    a(f'v_mov_b32 {v(vt)}, s20')
    a(f'v_mov_b32 {v(vt2)}, s21')
    a(f'v_cmp_gt_u32 vcc, 2, {v(vg)}')
    a(f'v_and_b32 {v(vo2)}, 1, {v(vg)}')
    a(f'v_mul_u32_u24 {v(vo2)}, 5120, {v(vo2)}')
    a(f'v_cndmask_b32 {v(vt)}, {v(vt2)}, {v(vt)}, vcc')
    a(f'v_mul_u32_u24 {v(vo1)}, 320, {v(vw)}')
    a(f'v_add3_u32 {v(vt)}, {v(vt)}, {v(vo2)}, {v(vo1)}')
    a(f'v_lshl_add_u32 {v(vo1)}, {v(vj)}, 2, {v(vt)}')
    a(f'v_and_b32 {v(vo2)}, 3, {v(vj)}')
    a(f'v_mul_u32_u24 {v(vo2)}, 80, {v(vo2)}')
    a(f'v_and_b32 {v(vt2)}, 12, {v(vj)}')
    a(f'v_add3_u32 {v(vo2)}, {v(vo2)}, {v(vt2)}, {v(vt)}')
    a('s_waitcnt lgkmcnt(0)')
    a.raw('; STAMP')
    srd(a, 8, 4, XB)
    srd(a, 12, 6, XB)
    for t in range(4):
        for i in range(4):
            a(f'buffer_load_dword {v(X[t]+i)}, {v(vo1)}, s[8:11], 0 offen offset:{1280*i+80*t}')
    for i in range(4):
        a(f'buffer_load_dword {v(X[4]+i)}, {v(vo2)}, s[8:11], 0 offen offset:{1280*i+64}')
    k = [0]
    def sincos(mul, base_reg, step_reg):
        A_, C_, S_ = T[k[0] & 1]; k[0] += 1
        a(f'v_fmamk_f32 {v(A_)}, {v(step_reg)}, {f32(mul)}, {v(base_reg)}')
        a(f'v_cos_f32 {v(C_)}, {v(A_)}')
        a(f'v_sin_f32 {v(S_)}, {v(A_)}')
        return C_, S_
    a(f'v_lshrrev_b32 {v(vt)}, 1, {v(vj)}')
    a(f'v_lshlrev_b32 {v(vt)}, 8, {v(vt)}')
    a(f'v_add_u32 {v(vt)}, s18, {v(vt)}')
    a(f'v_cvt_f32_u32 {v(vf)}, {v(vt)}')
    a(f'v_mul_f32 {v(vf)}, {f32(1/2048)}, {v(vf)}')
    a(f'v_and_b32 {v(vt)}, 1, {v(vg)}')
    a(f'v_lshlrev_b32 {v(vt)}, 2, {v(vt)}')
    a(f'v_cvt_f32_u32 {v(vn)}, {v(vt)}')
    a(f'v_lshlrev_b32 {v(vx)}, 30, {v(vg)}')
    a(f'v_and_b32 {v(vx)}, 0x80000000, {v(vx)}')
    a(f'v_and_b32 {v(vt)}, 1, {v(vj)}')
    a(f'v_cvt_f32_u32 {v(vt)}, {v(vt)}')
    a(f'v_mul_f32 {v(vt)}, {f32(0.25)}, {v(vt)}')
    a(f'v_xor_b32 {v(vt)}, {v(vt)}, {v(vx)}')
    a(f'v_fma_f32 {v(vn)}, {v(vn)}, {v(vf)}, {v(vt)}')
    for i in range(4):
        C_, S_ = sincos(i, vn, vf)
        a(f'v_cvt_pk_bf16_f32 {v(Mre+i)}, {v(C_)}, {v(S_)}')
        a(f'v_cvt_pk_bf16_f32 {v(Mim+i)}, -{v(S_)}, {v(C_)}')
        a(f'v_xor_b32 {v(Mre+i)}, {v(Mre+i)}, {v(vx)}')
        a(f'v_xor_b32 {v(Mim+i)}, {v(Mim+i)}, {v(vx)}')
    a(f'v_cvt_f32_u32 {v(vt)}, {v(vj)}')
    a(f'v_cvt_f32_u32 {v(vt2)}, {v(vg)}')
    a(f'v_mul_f32 {v(vf)}, {f32(1/16)}, {v(vt)}')
    a(f'v_mul_f32 {v(vn)}, 4.0, {v(vt2)}')
    a(f'v_mul_f32 {v(vn)}, {v(vn)}, {v(vf)}')
    for i in range(4):
        C_, S_ = sincos(i, vn, vf)
        a(f'v_cvt_pk_bf16_f32 {v(Fre+i)}, {v(C_)}, {v(S_)}')
        a(f'v_cvt_pk_bf16_f32 {v(Fim+i)}, -{v(S_)}, {v(C_)}')
    a(f'v_add_f32 {v(vt2)}, {v(vt2)}, {v(vt2)}')
    a(f'v_mul_f32 {v(vf)}, {f32(1/640)}, {v(vt)}')
    a(f'v_mul_f32 {v(vn)}, {v(vt2)}, {v(vf)}')
    for tau in range(5):
        for par in range(2):
            A_ = T[k[0] & 1][0]; k[0] += 1
            a(f'v_fmamk_f32 {v(A_)}, {v(vf)}, {f32(8*tau+par)}, {v(vn)}')
            a(f'v_cos_f32 {v(TC[tau]+par)}, {v(A_)}')
            a(f'v_sin_f32 {v(TS[tau]+par)}, {v(A_)}')
    for o in range(3):
        if o:
            a(f'v_add_f32 {v(vt)}, {f32(16.0)}, {v(vt)}')
        a(f'v_mul_f32 {v(vf)}, {f32(1/40)}, {v(vt)}')
        a(f'v_mul_f32 {v(vn)}, {v(vt2)}, {v(vf)}')
        prev = None
        for sl in range(10):
            C_, S_ = sincos(8*(sl//2) + (sl & 1), vn, vf)
            if prev: a(prev)
            prev = f'v_cvt_pk_bf16_f32 {v(H[o]+sl)}, {v(C_)}, {v(S_)}'
        a(f'v_mov_b32 {v(H[o]+10)}, 0')
        a(prev)
        a(f'v_mov_b32 {v(H[o]+11)}, 0')
    for t0 in range(2):
        a(f'v_mov_b32 {v(V[t0]+10)}, 0')
        a(f'v_mov_b32 {v(V[t0]+11)}, 0')
    a(f'v_mul_u32_u24 {v(vt)}, {336*16}, {v(vg)}')
    a(f'v_mul_u32_u24 {v(vt2)}, {40*16}, {v(vw)}')
    a(f'v_add_u32 {v(vt)}, {v(vt)}, {v(vt2)}')
    a(f'v_lshl_add_u32 {v(vw1)}, {v(vj)}, 4, {v(vt)}')
    a(f'v_lshl_add_u32 {v(vw2)}, {v(vj)}, 2, {v(vt)}')
    a(f'v_mul_u32_u24 {v(vra)}, 336, {v(vw)}')
    a(f'v_mad_u32_u24 {v(vra)}, {v(vg)}, 40, {v(vra)}')
    a(f'v_bfe_u32 {v(vt)}, {v(vj)}, 1, 1')
    a(f'v_mul_u32_u24 {v(vt)}, 168, {v(vt)}')
    a(f'v_and_b32 {v(vt2)}, 1, {v(vj)}')
    a(f'v_mad_u32_u24 {v(vt)}, {v(vt2)}, 20, {v(vt)}')
    a(f'v_lshrrev_b32 {v(vt2)}, 2, {v(vj)}')
    a(f'v_add3_u32 {v(vra)}, {v(vra)}, {v(vt)}, {v(vt2)}')
    a(f'v_lshlrev_b32 {v(vra)}, 4, {v(vra)}')
    a(f'v_mul_u32_u24 {v(vst)}, 655360, {v(vw)}')
    a(f'v_lshl_add_u32 {v(vst)}, {v(vj)}, 5, {v(vst)}')
    a(f'v_lshl_add_u32 {v(vst)}, {v(vg)}, 3, {v(vst)}')
    a('s_mul_i32 s22, s18, 1280')
    a('s_add_u32 s23, s22, 327680')
    a.raw('; STAMP')
    for t in range(5):
        a(f's_waitcnt vmcnt({4*(4-t)})')
        a(f'v_mfma_f32_16x16x32_bf16 {v(Dre[t],4)}, {v(Mre,4)}, {v(X[t],4)}, 0')
        a(f'v_mfma_f32_16x16x32_bf16 {v(Dim[t],4)}, {v(Mim,4)}, {v(X[t],4)}, 0')
    WOFF = [0, 320, 2688, 3008]
    for t in range(4):
        for r in range(4):
            a(f'v_cvt_pk_bf16_f32 {v(P[r]+t)}, {v(Dre[t]+r)}, {v(Dim[t]+r)}')
    for r in range(4):
        a(f'ds_write_b128 {v(vw1)}, {v(P[r],4)} offset:{WOFF[r]}')
    for r in range(4):
        a(f'v_cvt_pk_bf16_f32 {v(P4+r)}, {v(Dre[4]+r)}, {v(Dim[4]+r)}')
    for r in range(4):
        a(f'ds_write_b32 {v(vw2)}, {v(P4+r)} offset:{WOFF[r]+256}')
    a('s_waitcnt lgkmcnt(0)')
    a.raw('; STAMP')
    a('s_barrier')
    a.raw('; STAMP')
    for tau in range(5):
        a(f'ds_read_b128 {v(X[tau],4)}, {v(vra)} offset:{64*tau}')
    for tau in range(5):
        a(f's_waitcnt lgkmcnt({4-tau})')
        a(f'v_mfma_f32_16x16x32_bf16 {v(Dre[tau],4)}, {v(X[tau],4)}, {v(Fre,4)}, 0')
        a(f'v_mfma_f32_16x16x32_bf16 {v(Dim[tau],4)}, {v(X[tau],4)}, {v(Fim,4)}, 0')
    for tau in range(5):
        for t0 in range(2):
            ta, tb = tmp[2*t0], tmp[2*t0+1]
            re = v(Dre[tau]+2*t0, 2); im = v(Dim[tau]+2*t0, 2)
            a(f'v_pk_mul_f32 {v(ta,2)}, {re}, {v(TC[tau],2)}')
            a(f'v_pk_mul_f32 {v(tb,2)}, {im}, {v(TC[tau],2)}')
            a(f'v_pk_fma_f32 {v(ta,2)}, {im}, {v(TS[tau],2)}, {v(ta,2)}')
            a(f'v_pk_fma_f32 {v(tb,2)}, {re}, {v(TS[tau],2)}, {v(tb,2)} neg_lo:[0,1,0] neg_hi:[0,1,0]')
            for par in range(2):
                a(f'v_cvt_pk_bf16_f32 {v(V[t0]+2*tau+par)}, {v(ta+par)}, {v(tb+par)}')
    ACC = {}
    accs = Dre + Dim
    for t0 in range(2):
        for o in range(3):
            ACC[t0, o] = accs[t0*3+o]
    for st in range(3):
        for t0 in range(2):
            for o in range(3):
                c = '0' if st == 0 else v(ACC[t0,o],4)
                a(f'v_mfma_f32_16x16x32_bf16 {v(ACC[t0,o],4)}, {v(V[t0]+4*st,4)}, {v(H[o]+4*st,4)}, {c}')
    outs = P + [P4]
    for o in range(3):
        if o == 2:
            a('s_mov_b32 exec_lo, 0x00ff00ff')
            a('s_mov_b32 exec_hi, 0x00ff00ff')
        for t0 in range(2):
            d = outs[o] + 2*t0
            a(f'v_cvt_pk_bf16_f32 {v(d)}, {v(ACC[t0,o])}, {v(ACC[t0,o]+1)}')
            a(f'v_cvt_pk_bf16_f32 {v(d+1)}, {v(ACC[t0,o]+2)}, {v(ACC[t0,o]+3)}')
            a(f'buffer_store_dwordx2 {v(d,2)}, {v(vst)}, s[12:15], {s(22+t0)} offen offset:{512*o}')
    a.raw('; STAMP')
    a.raw('; DUMP 1 4')
    a('L_k2_done:')
    a('s_endpgm')
    return a.finish(), R.n

def build():
    k1, n1 = gen_k1(); k2, n2 = gen_k2()
    out = HEADER
    out += '; @launch kernel=fnet_col_kernel grid=(160,1,1) block=(512,1,1) lds=16384\n'
    out += '; @launch kernel=fnet_row_kernel grid=(256,1,1) block=(256,1,1) lds=21504\n'
    out += '.amdgcn_target "amdgcn-amd-amdhsa--gfx950"\n.text\n'
    for name, body in (('fnet_col_kernel', k1), ('fnet_row_kernel', k2)):
        out += f'.globl {name}\n.p2align 8\n.type {name},@function\n{name}:\n{body}'
    out += '.section .rodata,"a"\n.p2align 6\n' + desc('fnet_col_kernel', n1) + '.p2align 6\n' + desc('fnet_row_kernel', n2)
    return out

if __name__ == '__main__':
    dst = sys.argv[1] if len(sys.argv) > 1 else 'standalone__spectral_fnet__prompt.s'
    open(dst, 'w').write(build())
```

```python
import re
def instrument(text):
    out = []; n = 0
    for l in text.split('\n'):
        t = l.strip()
        if t.startswith('; STAMP'):
            out.append(f'    s_memrealtime s[{60+2*n}:{61+2*n}]')
            if 'nowait' not in t: out.append('    s_waitcnt lgkmcnt(0)')
            n += 1
        elif t.startswith('; SETN'):
            n = int(t.split()[2])
        elif t.startswith('; DUMP'):
            _, _, ki, ptr = t.split()
            ki = int(ki); ptr = int(ptr)
            out.append('    s_waitcnt vmcnt(0)')
            out.append(f'    s_memrealtime s[{60+2*n}:{61+2*n}]'); n += 1
            out.append('    s_waitcnt lgkmcnt(0)')
            out.append('    s_mov_b64 exec, -1')
            out.append('    v_and_b32 v1, 63, v0')
            out.append('    v_cmp_eq_u32 vcc, 0, v1')
            out.append('    s_nop 4')
            out.append('    s_mov_b64 exec, vcc')
            out.append(f'    s_mov_b32 s56, s{ptr}')
            out.append(f'    s_and_b32 s57, s{ptr+1}, 0xffff')
            out.append(f'    s_mov_b32 s58, 0x2000000')
            out.append(f'    s_mov_b32 s59, 0x20000')
            out.append(f'    s_lshl_b32 s55, s2, 10')
            out.append(f'    s_add_u32 s55, s55, {(8+ki) << 20}')
            out.append('    v_mov_b32 v1, v0')
            out.append('    s_getreg_b32 s54, hwreg(HW_REG_XCC_ID)')
            out.append('    v_mov_b32 v2, s54')
            out.append(f'    buffer_store_dword v2, v1, s[56:59], s55 offen offset:60')
            for k in range(n):
                out.append(f'    v_mov_b32 v{2+k}, s{60+2*k}')
                out.append(f'    buffer_store_dword v{2+k}, v1, s[56:59], s55 offen offset:{4*k}')
            n = 0
        else:
            out.append(l)
    t = '\n'.join(out)
    t = re.sub(r'\.amdhsa_next_free_sgpr \d+', '.amdhsa_next_free_sgpr 96', t)
    return t
```

```python
import gen1, instr, sys
def diag_kernel(a, b, mult=4):
    def off(x): return ((8+x[0]) << 20) + 4*x[1]
    t = '.globl fnet_diag_kernel\n.p2align 8\n.type fnet_diag_kernel,@function\nfnet_diag_kernel:\n'
    t += '    s_memrealtime s[10:11]\n    s_cmp_ge_u32 s2, 1\n    s_cbranch_scc1 L_dg_done\n'
    t += '    s_load_dwordx2 s[4:5], s[0:1], 56\n    s_waitcnt lgkmcnt(0)\n'
    t += f'    s_add_u32 s6, s4, {off(a)}\n    s_addc_u32 s7, s5, 0\n    s_load_dword s12, s[6:7], 0\n'
    if b is not None:
        t += f'    s_add_u32 s8, s4, {off(b)}\n    s_addc_u32 s9, s5, 0\n    s_load_dword s13, s[8:9], 0\n'
    else:
        t += '    s_mov_b32 s13, s10\n'
    t += '    s_waitcnt lgkmcnt(0)\n    s_sub_u32 s14, s13, s12\n    s_cmp_gt_u32 s14, 5000\n    s_cbranch_scc1 L_dg_done\n'
    t += f'    s_mul_i32 s14, s14, {mult}\n'
    t += 'L_dg_loop:\n    s_memrealtime s[16:17]\n    s_waitcnt lgkmcnt(0)\n    s_sub_u32 s18, s16, s10\n    s_cmp_lt_u32 s18, s14\n    s_cbranch_scc1 L_dg_loop\n'
    t += 'L_dg_done:\n    s_endpgm\n'
    return t
def make(base, a, b):
    LE = '; @launch kernel=fnet_diag_kernel grid=(1,1,1) block=(64,1,1) lds=0\n'
    t = base.replace('.section .rodata', diag_kernel(a, b) + '.section .rodata')
    t += '.p2align 6\n' + gen1.desc('fnet_diag_kernel', 8)
    t = t.replace('.amdgcn_target', LE + '.amdgcn_target', 1)
    return t
if __name__ == '__main__':
    base = instr.instrument(gen1.build())
    V = {'0': ((0,0),(0,0)), '1': ((0,0),None), '2': ((0,0),(1,0)), '3': ((0,0),(0,6)), '4': ((1,0),(1,6)), '5': ((0,0),(0,3))}
    for k,(a,b) in V.items():
        open(f'dg{k}.s','w').write(make(base, a, b))
```

```python
import re

TRANS = ("v_exp_f32","v_log_f32","v_rcp_f32","v_rsq_f32","v_sqrt_f32","v_sin_f32","v_cos_f32")

def regs_of(tok):
    tok = tok.strip()
    tok = tok.lstrip('-')
    if tok.startswith('abs(') or tok.startswith('neg('):
        tok = tok[4:-1]
    m = re.fullmatch(r'([vsa])\[(\d+):(\d+)\]', tok)
    if m:
        return {(m.group(1), i) for i in range(int(m.group(2)), int(m.group(3))+1)}
    m = re.fullmatch(r'([vsa])(\d+)', tok)
    if m:
        return {(m.group(1), int(m.group(2)))}
    if tok == 'vcc': return {('s','vcc')}
    if tok == 'exec': return {('s','exec')}
    if tok in ('exec_lo','exec_hi'): return {('s','exec')}
    if tok == 'm0': return {('s','m0')}
    return set()

class Ins:
    def __init__(self, text):
        self.text = text
        t = text.split(';')[0].strip()
        self.mn = t.split()[0] if t else ''
        rest = t[len(self.mn):].strip()
        ops = [o.strip() for o in rest.split(',')] if rest else []
        if ops:
            ops[-1] = ops[-1].split()[0] if ops[-1] else ops[-1]
        self.ops = ops
        mn = self.mn
        self.w = set(); self.r = set()
        self.kind = 'other'
        R = [regs_of(o) for o in ops]
        allr = lambda l: set().union(*l) if l else set()
        if mn.startswith('v_mfma'):
            self.kind = 'mfma'; self.w = R[0]; self.r = allr(R[1:]); self.srcc = R[3]; self.ab = R[1] | R[2]
            self.passes = 8 if '32x32' in mn else 4
        elif mn.startswith('v_permlane') and 'swap' in mn:
            self.kind = 'valu'; self.w = R[0] | R[1]; self.r = R[0] | R[1]; self.perm = True
        elif mn.startswith('v_swap'):
            self.kind = 'valu'; self.w = R[0] | R[1]; self.r = R[0] | R[1]
        elif mn.startswith('v_cmpx'):
            self.kind = 'valu'; self.w = R[0] | {('s','exec')}; self.r = allr(R[1:])
        elif mn.startswith('v_cmp'):
            self.kind = 'valu'; self.w = R[0]; self.r = allr(R[1:])
        elif mn.startswith('v_readfirstlane') or mn.startswith('v_readlane'):
            self.kind = 'valu'; self.w = R[0]; self.r = allr(R[1:]); self.rl = True
        elif mn.startswith('v_'):
            self.kind = 'valu'; self.w = R[0]; self.r = allr(R[1:])
            if mn.startswith('v_fmac') or mn.startswith('v_pk_fmac'): self.r |= R[0]
            if mn.startswith('v_cndmask') and len(ops) == 3: self.r |= {('s','vcc')}
        elif mn.startswith('buffer_load') or mn.startswith('global_load'):
            self.kind = 'vmem'
            if 'lds' in t.split() or '_lds_' in mn:
                self.r = allr(R) | {('s','m0')}; self.ldsdma = True
            else:
                self.w = R[0]; self.r = allr(R[1:])
        elif mn.startswith('buffer_store') or mn.startswith('global_store') or mn.startswith('buffer_atomic') or mn.startswith('global_atomic'):
            self.kind = 'vmem'; self.r = allr(R); self.store = True
            self.data = R[0] if mn.startswith('buffer') else R[1]
            self.wide = ('x3' in mn or 'x4' in mn)
            if 'atomic' in mn and 'sc0' in t.split(): self.w = R[0]
        elif mn.startswith('ds_read') or '_rtn_' in mn or mn.startswith('ds_bpermute') or mn.startswith('ds_permute') or mn.startswith('ds_swizzle'):
            self.kind = 'ds'; self.w = R[0]; self.r = allr(R[1:])
        elif mn.startswith('ds_'):
            self.kind = 'ds'; self.r = allr(R)
        elif mn.startswith('s_load') or mn.startswith('s_buffer_load'):
            self.kind = 'smem'; self.w = R[0]; self.r = allr(R[1:])
        elif mn.startswith('s_cmp') or mn.startswith('s_cbranch') or mn in ('s_branch','s_waitcnt','s_barrier','s_endpgm','s_nop','s_setprio','s_sleep'):
            self.kind = 'salu'; self.r = allr(R)
        elif mn.startswith('s_'):
            self.kind = 'salu'; self.w = R[0]; self.r = allr(R[1:])
            if 'saveexec' in mn: self.w |= {('s','exec')}
        self.trans = any(mn.startswith(x) for x in TRANS)
    def states(self):
        if self.mn == 's_nop': return int(self.ops[0], 0) + 1
        if self.mn == '' or self.mn.endswith(':') or self.mn.startswith('.'): return 0
        return 1

def need(p, c):
    n = 0
    vw = {x for x in p.w if x[0] in 'va'}
    sw = {x for x in p.w if x[0] == 's'}
    if p.kind == 'valu':
        if c.kind == 'mfma' and (vw & c.r): n = max(n, 2)
        if c.kind == 'mfma' and ('s','exec') in sw: n = max(n, 4)
        if p.trans and c.kind == 'valu' and not c.trans and (vw & c.r): n = max(n, 1)
        if p.trans and c.kind != 'valu' and (vw & c.r): n = max(n, 1)
        if getattr(c, 'rl', False) and (vw & c.r): n = max(n, 1)
        if getattr(c, 'perm', False) and (vw & c.r): n = max(n, 2)
        if c.kind == 'valu' and 'dpp' in c.text and (vw & c.r): n = max(n, 2)
        if c.kind == 'vmem' and (sw & c.r): n = max(n, 5)
        if c.kind == 'valu' and (sw & c.r): n = max(n, 2)
        if c.kind in ('salu','smem') and (sw & c.r): n = max(n, 2)
        if getattr(c, 'rl', False) and ('s','exec') in sw: n = max(n, 4)
        if c.mn.startswith('s_cbranch_exec') and ('s','exec') in sw: n = max(n, 5)
        if c.mn.startswith('s_cbranch_vcc') and ('s','vcc') in sw: n = max(n, 5)
    if p.kind == 'mfma':
        big = {4: 8, 8: 12}[p.passes]
        if c.kind == 'mfma':
            if vw & c.ab: n = max(n, big)
            if vw & c.srcc:
                if not (c.srcc == p.w and c.passes == p.passes): n = max(n, big - 2)
            elif vw & c.w: n = max(n, big)
        elif c.kind in ('valu','vmem','ds'):
            if vw & (c.r | c.w): n = max(n, big)
        if c.kind == 'valu' and (p.srcc & c.w): n = max(n, {4: 3, 8: 7}[p.passes])
    if p.kind == 'salu':
        if ('s','m0') in sw and (getattr(c, 'ldsdma', False)): n = max(n, 1)
    if getattr(p, 'store', False) and p.wide:
        if p.data & c.w: n = max(n, 2)
    return n

class Asm:
    def __init__(self):
        self.lines = []
    def __call__(self, text):
        for l in text.strip().split('\n'):
            l = l.strip()
            if l: self.lines.append(l)
    def raw(self, text):
        self.lines.append(('raw', text))
    def finish(self):
        out = []; hist = []; nops = 0
        for l in self.lines:
            if isinstance(l, tuple):
                out.append(l[1]); continue
            c = Ins(l)
            if c.states() == 0:
                out.append(l); continue
            req = 0; dist = 0
            for p in reversed(hist[-24:]):
                nd = need(p, c)
                if nd - dist > req: req = nd - dist
                dist += p.states()
            while req > 0:
                k = min(req, 16)
                n = Ins('s_nop %d' % (k-1)); hist.append(n); out.append('    s_nop %d' % (k-1)); req -= k; nops += k
            hist.append(c); out.append('    ' + l)
        self.nops = nops
        return '\n'.join(out) + '\n'

class Regs:
    def __init__(self, start=1):
        self.n = start
    def alloc(self, k=1, align=1):
        self.n = (self.n + align - 1)//align*align
        b = self.n; self.n += k
        return b

def v(b, k=1):
    return 'v%d' % b if k == 1 else 'v[%d:%d]' % (b, b+k-1)
def s(b, k=1):
    return 's%d' % b if k == 1 else 's[%d:%d]' % (b, b+k-1)
import struct
def f32(x):
    return '0x%08x' % struct.unpack('<I', struct.pack('<f', x))[0]
```

```python
import sys, re, instr
from asmlib import *
from gen1 import desc
NAME = 'standalone__spectral_fnet__prompt_kernel'
def diag_kernel(ki, st, op, nw1, mult=4):
    a = Asm()
    a('s_memrealtime s[10:11]')
    a('s_cmp_ge_u32 s2, 1'); a('s_cbranch_scc1 L_dg_done')
    a('s_load_dwordx2 s[4:5], s[0:1], 56'); a('s_waitcnt lgkmcnt(0)')
    a('s_mov_b32 s12, s4'); a('s_and_b32 s13, s5, 0xffff'); a('s_mov_b32 s14, 0x2000000'); a('s_mov_b32 s15, 0x20000')
    a('v_mov_b32 v20, 0x7fffffff')
    a('v_mov_b32 v21, ' + ('0x80000000' if op == 'max' else '0x7fffffff'))
    for m in range(4):
        a(f'v_add_u32 v1, {64*m}, v0')
        a('v_min_u32 v2, 159, v1'); a('v_lshlrev_b32 v2, 10, v2'); a('v_lshlrev_b32 v1, 10, v1')
        a(f's_mov_b32 s16, {8 << 20}'); a(f's_mov_b32 s17, {(8+ki) << 20}')
        for w in range(nw1):
            a(f'buffer_load_dword v{4+w}, v2, s[12:15], s16 offen offset:{64*w}')
        a('s_waitcnt vmcnt(0)')
        for w in range(nw1):
            a(f'v_subrev_u32 v{4+w}, s10, v{4+w}'); a(f'v_min_i32 v20, v20, v{4+w}')
        ws = range(nw1) if ki == 0 else range(nw1, nw1+4)
        for i, w in enumerate(ws):
            a(f'buffer_load_dword v{4+i}, {"v2" if ki == 0 else "v1"}, s[12:15], s17 offen offset:{64*w+4*st}')
        a('s_waitcnt vmcnt(0)')
        for i, w in enumerate(ws):
            a(f'v_subrev_u32 v{4+i}, s10, v{4+i}'); a(f'v_{op}_i32 v21, v21, v{4+i}')
    a('v_readlane_b32 s20, v20, 0'); a('v_readlane_b32 s21, v21, 0')
    for l in range(1, 64):
        a(f'v_readlane_b32 s22, v20, {l}'); a(f'v_readlane_b32 s23, v21, {l}')
        a('s_min_i32 s20, s20, s22'); a(f's_{op}_i32 s21, s21, s23')
    a('s_sub_u32 s18, s21, s20'); a('s_cmp_gt_u32 s18, 5000'); a('s_cbranch_scc1 L_dg_done')
    a(f's_mul_i32 s18, s18, {mult}'); a('s_add_u32 s18, s18, 800')
    a('L_dg_loop:'); a('s_memrealtime s[16:17]'); a('s_waitcnt lgkmcnt(0)'); a('s_sub_u32 s19, s16, s10'); a('s_cmp_lt_u32 s19, s18'); a('s_cbranch_scc1 L_dg_loop')
    a('L_dg_done:'); a('s_endpgm')
    return '.globl fnet_diag_kernel\n.p2align 8\n.type fnet_diag_kernel,@function\nfnet_diag_kernel:\n' + a.finish()
def make(base, ki, st, op, nw1):
    t = instr.instrument(base)
    t = re.sub(r'; @launch grid', f'; @launch kernel={NAME} grid', t)
    t = t.replace('.amdgcn_target', '; @launch kernel=fnet_diag_kernel grid=(1,1,1) block=(64,1,1) lds=0\n.amdgcn_target', 1)
    t = t.replace('.section .rodata', diag_kernel(ki, st, op, nw1) + '.section .rodata')
    t += '.p2align 6\n' + desc('fnet_diag_kernel', 32)
    return t
if __name__ == '__main__':
    base = open(sys.argv[1]).read(); nw1 = int(sys.argv[2])
    for i, (ki, st, op) in enumerate(eval(sys.argv[3])):
        open(f'dh{i}.s', 'w').write(make(base, ki, st, op, nw1))
```
